```python
import torch

def _softmax(x, axis=-1):
    return torch.softmax(x, dim=axis)
def _gelu(x):
    return torch.nn.functional.gelu(x, approximate="tanh")
def _silu(x):
    return torch.nn.functional.silu(x)
def _sigmoid(x):
    return torch.sigmoid(x)
def _layernorm(x, axis=-1, eps=1e-5):
    m = x.mean(dim=axis, keepdim=True)
    v = x.var(dim=axis, keepdim=True, unbiased=False)
    return (x - m) / torch.sqrt(v + eps)
def _scatter_add(tgt, idx, src, axis=0):
    return tgt.clone().index_add_(axis, idx, src)
def _segment_sum(src, seg, n):
    out = torch.zeros((n,) + src.shape[1:], dtype=src.dtype)
    return out.index_add_(0, seg, src)
def _pad(x, pw):
    flat = tuple(v for pair in reversed(pw) for v in pair)
    return torch.nn.functional.pad(x, flat)

kernel_name = 'interleave_layers__mha_block__dense_activation_relu__prompt'

def setup_inputs():

    _w = (lambda a: (lambda t: t.to(torch.bfloat16) if t.is_floating_point() else t)(torch.as_tensor(a)))
    def _A_setup():
        B, S, D, H = 1, 2048, 448, 16
        return {
            "x": _w((lambda *s: torch.randn(*s, dtype=torch.bfloat16) * 0.05)(B, S, D)),
            "wqkv": _w((lambda *s: torch.randn(*s, dtype=torch.bfloat16) * 0.05)(D, 3 * D)),
            "wo": _w((lambda *s: torch.randn(*s, dtype=torch.bfloat16) * 0.05)(D, D)),
        }
    _A_in = _A_setup()

    def _B_setup():
        B, S, D, Dff = 1, 2048, 448, 1792
        return {
            "x": _w((lambda *s: torch.randn(*s, dtype=torch.bfloat16) * 0.05)(B, S, D)),
            "w1": _w((lambda *s: torch.randn(*s, dtype=torch.bfloat16) * 0.05)(D, Dff)),
            "w2": _w((lambda *s: torch.randn(*s, dtype=torch.bfloat16) * 0.05)(Dff, D)),
        }
    _B_in = _B_setup()

    return {
        "A_x": _A_in["x"],
        "A_wqkv": _A_in["wqkv"],
        "A_wo": _A_in["wo"],
        "B_x": _B_in["x"],
        "B_w1": _B_in["w1"],
        "B_w2": _B_in["w2"],
    }

def reference(A_x, A_wqkv, A_wo, B_x, B_w1, B_w2):
    def _A_ref(x, wqkv, wo):
        B, S, D = x.shape
        H = 16
        Dh = D // H
        qkv = (lambda x, *d: x.permute(*d))((x @ wqkv).reshape(B, S, 3, H, Dh), 2, 0, 3, 1, 4)
        q, k, v = qkv[0], qkv[1], qkv[2]
        scores = torch.einsum("bhqd,bhkd->bhqk", q, k) * (Dh ** -0.5)
        p = _softmax(scores, axis=-1)
        o = torch.einsum("bhqk,bhkd->bhqd", p, v)
        return (lambda x, *d: x.permute(*d))(o, 0, 2, 1, 3).reshape(B, S, D) @ wo

    def _B_ref(x, w1, w2):
        h = torch.einsum("bsd,df->bsf", x, w1)
        zero = torch.zeros_like(h)
        h = torch.maximum(h, zero)
        return torch.einsum("bsf,fd->bsd", h, w2)

    x = A_x
    x = x + _A_ref(_layernorm(x, axis=-1), A_wqkv, A_wo)
    x = x + _B_ref(_layernorm(x, axis=-1), B_w1, B_w2)
    x = x + _A_ref(_layernorm(x, axis=-1), A_wqkv, A_wo)
    x = x + _B_ref(_layernorm(x, axis=-1), B_w1, B_w2)
    return x
```

```python
import re

TRANS = ("v_exp_f32", "v_log_f32", "v_rcp_f32", "v_rsq_f32", "v_sqrt_f32", "v_sin_f32", "v_cos_f32", "v_rcp_iflag_f32")
_REG = re.compile(r"^(-|abs\()?([vas])(\d+)\)?$")
_RNG = re.compile(r"^(-)?([vas])\[(\d+):(\d+)\]$")

def regs_of(tok):
    tok = tok.strip()
    if tok.startswith("|") and tok.endswith("|"): tok = tok[1:-1]
    m = _REG.match(tok)
    if m: return [(m.group(2), int(m.group(3)))]
    m = _RNG.match(tok)
    if m: return [(m.group(2), i) for i in range(int(m.group(3)), int(m.group(4)) + 1)]
    if tok == "vcc": return [("s", 106), ("s", 107)]
    if tok == "vcc_lo": return [("s", 106)]
    if tok == "vcc_hi": return [("s", 107)]
    if tok == "exec": return [("s", 126), ("s", 127)]
    if tok == "m0": return [("s", 124)]
    return []

class Ins:
    def __init__(self, text):
        self.text = text
        t = text.split(";")[0].strip()
        self.label = t.endswith(":")
        self.op = t.split()[0] if t else ""
        rest = t[len(self.op):].strip()
        ops, depth, cur = [], 0, ""
        for ch in rest:
            if ch in "[(": depth += 1
            if ch in "])": depth -= 1
            if ch == "," and depth == 0: ops.append(cur.strip()); cur = ""
            else: cur += ch
        if cur.strip(): ops.append(cur.strip())
        self.mods = ""
        if ops:
            parts = ops[-1].split()
            ops[-1] = parts[0]; self.mods = " ".join(parts[1:])
        self.ops = ops
        self.classify()

    def classify(self):
        op, ops = self.op, self.ops
        self.w, self.r = [], []
        self.kind = "other"; self.A = self.B = self.C = []
        R = lambda i: regs_of(ops[i]) if i < len(ops) else []
        if self.label or not op: self.kind = "label"; return
        if op.startswith("v_mfma"):
            self.kind = "mfma"; self.w = R(0); self.A, self.B, self.C = R(1), R(2), R(3)
            self.r = self.A + self.B + self.C
            self.passes = 8 if "32x32x16" in op else 4
        elif op.startswith("v_"):
            self.kind = "valu"
            if op.startswith("v_permlane32_swap") or op.startswith("v_permlane16_swap") or op.startswith("v_swap"):
                self.w = R(0) + R(1); self.r = R(0) + R(1)
            elif op.startswith("v_cmp"):
                self.w = R(0); self.r = [x for i in range(1, len(ops)) for x in R(i)]
            elif op.startswith(("v_add_co", "v_sub_co", "v_addc_co", "v_subb_co", "v_div_scale", "v_mad_u64")):
                self.w = R(0) + R(1); self.r = [x for i in range(2, len(ops)) for x in R(i)]
            else:
                self.w = R(0); self.r = [x for i in range(1, len(ops)) for x in R(i)]
                if op.startswith(("v_fmac", "v_dot2c", "v_pk_fmac", "v_writelane")) or "row_" in self.mods or "quad_perm" in self.mods or "dst_unused:UNUSED_PRESERVE" in self.text:
                    self.r += R(0)
            if op == "v_nop": self.kind = "other"
        elif op.startswith("buffer_") or op.startswith("global_"):
            self.kind = "vmem"
            is_lds = " lds" in (" " + self.mods) or "_lds_" in op
            if op in ("buffer_inv", "buffer_wbl2"):
                pass
            elif "load" in op and not is_lds:
                self.w = R(0); self.r = [x for i in range(1, len(ops)) for x in R(i)]
                if "d16" in op: self.r += R(0)
            elif "atomic" in op and "sc0" in self.mods and op.startswith("buffer_"):
                self.w = R(0); self.r = [x for i in range(0, len(ops)) for x in R(i)]
            else:
                self.r = [x for i in range(0, len(ops)) for x in R(i)]
            if is_lds: self.r += [("s", 124)]
            self.is_lds = is_lds
            self.wide_store = ("store" in op and ("x3" in op or "x4" in op))
            self.data = R(0) if (op.startswith("buffer_") and "store" in op) else (R(1) if "store" in op else [])
        elif op.startswith("ds_"):
            self.kind = "ds"
            if op.startswith(("ds_read", "ds_bpermute", "ds_permute", "ds_swizzle")) or "_rtn" in op:
                self.w = R(0); self.r = [x for i in range(1, len(ops)) for x in R(i)]
            else:
                self.r = [x for i in range(0, len(ops)) for x in R(i)]
        elif op.startswith("s_"):
            self.kind = "salu"
            if op.startswith(("s_cmp", "s_cbranch", "s_branch", "s_waitcnt", "s_barrier", "s_nop", "s_endpgm", "s_sleep", "s_setprio", "s_bitcmp")):
                self.r = [x for i in range(len(ops)) for x in R(i)]
            else:
                self.w = R(0); self.r = [x for i in range(1, len(ops)) for x in R(i)]
                if "saveexec" in op: self.w += [("s", 126), ("s", 127)]
    def states(self):
        if self.kind == "label": return 0
        if self.op == "s_nop": return int(self.ops[0], 0) + 1
        return 1

def need(p, c):
    n = 0
    pw, cr, cw = set(p.w), set(c.r), set(c.w)
    if p.kind == "valu":
        vw = {x for x in pw if x[0] in "va"}
        sw = {x for x in pw if x[0] == "s"}
        isdot = p.op.startswith("v_dot")
        if c.kind == "mfma" and vw & cr: n = max(n, 3 if isdot else 2)
        if c.kind == "valu":
            if p.op in TRANS or p.op.rstrip("_e32").rstrip("_e64") in TRANS:
                if vw & cr and c.op not in TRANS: n = max(n, 1)
            if c.op.startswith("v_permlane") and vw & cr: n = max(n, 2)
            if c.op.startswith(("v_readfirstlane", "v_readlane")) and vw & cr: n = max(n, 1)
            if ("row_" in c.mods or "quad_perm" in c.mods or "wave_" in c.mods) and vw & cr: n = max(n, 2)
            if sw & cr: n = max(n, 4 if c.op.startswith(("v_readlane", "v_writelane", "v_div_fmas")) else 2)
            if isdot and vw & (cr | cw):
                if c.op == p.op:
                    srcab = set(x for i in (1, 2) for x in regs_of(c.ops[i]))
                    if vw & srcab: n = max(n, 3)
                else: n = max(n, 3)
            if ("op_sel" in p.text or "dst_sel" in p.text) and vw & (cr | cw): n = max(n, 1)
        if isdot and c.kind in ("vmem", "ds") and vw & cr: n = max(n, 3)
        if c.kind == "vmem" and sw & cr: n = max(n, 5)
        if c.kind == "salu" and sw & cr: n = max(n, 1)
    if p.kind == "mfma":
        big = p.passes == 8
        if c.kind == "mfma":
            if pw & (set(c.A) | set(c.B)): n = max(n, 12 if big else 8)
            if pw & set(c.C) and not (c.C == p.w and c.passes == p.passes): n = max(n, 10 if big else 6)
            if pw & cw and not (c.w == p.w): n = max(n, 10 if big else 6)
        elif c.kind in ("valu", "vmem", "ds"):
            if pw & (cr | cw): n = max(n, 12 if big else 8)
            if c.kind == "valu" and set(p.C) & cw: n = max(n, 7 if big else 3)
    if p.kind == "salu" and ("s", 124) in pw and c.kind == "vmem" and getattr(c, "is_lds", False): n = max(n, 1)
    if p.kind == "vmem" and getattr(p, "wide_store", False) and set(p.data) & cw:
        n = max(n, 2 if c.kind in ("valu", "mfma") else 1)
    return n

class Asm:
    def __init__(self):
        self.ins = []
    def __call__(self, text):
        for line in text.split("\n"):
            if line.strip(): self.ins.append(Ins(line.strip()))
    def raw(self, text):
        i = Ins("X:"); i.text = text; self.ins.append(i)
    def fix(self, window=24):
        out = []
        for c in self.ins:
            if c.kind != "label":
                dist, req = 0, 0
                for p in reversed(out):
                    if dist >= window: break
                    if p.kind == "label": continue
                    if p.op in ("s_branch", "s_endpgm", "s_setpc_b64"): break
                    r = need(p, c) - dist
                    req = max(req, r)
                    dist += p.states()
                while req > 0:
                    k = min(req, 16); out.append(Ins(f"s_nop {k-1}")); req -= k
            out.append(c)
        self.ins = out
    def check_branches(self, window=24):
        labels = {i.text.split(":")[0].strip(): n for n, i in enumerate(self.ins) if i.label}
        bad = []
        for n, b in enumerate(self.ins):
            if b.op.startswith(("s_cbranch", "s_branch")) and b.ops and b.ops[0] in labels:
                tgt = labels[b.ops[0]]
                pre = []; d = 0
                for p in reversed(self.ins[:n + 1]):
                    if d >= window: break
                    if p.kind == "label": continue
                    pre.append(p); d += p.states()
                dd = 0
                for c in self.ins[tgt:]:
                    if dd >= window: break
                    if c.kind == "label": continue
                    dist = dd
                    for p in pre:
                        if need(p, c) > dist: bad.append((p.text, c.text, need(p, c), dist))
                        dist += p.states()
                    dd += c.states()
                    if c.op in ("s_branch", "s_endpgm"): break
        return bad
    def text(self):
        return "\n".join((i.text if (i.label or i.text.startswith(".")) else "  " + i.text) for i in self.ins) + "\n"
```

```python
import sys, math, struct
from asmlib import Asm

NAME = "interleave_layers__mha_block__dense_activation_relu__prompt"
WQKV_P = 0x000000
WO_P   = 0x150000
W1_P   = 0x1C0000
W2_P   = 0x348000
CSQKV  = 0x4D0000
CS1    = 0x4D2000
XP  = [0x500000 + i * 0x200000 for i in range(4)]
ST  = [0xD00000 + i * 0x40000 for i in range(4)]
QP  = [0x1000000 + l * 0x200000 for l in range(2)]
KVP = [0x1400000 + l * 0x400000 for l in range(2)]
OP  = [0x1C00000 + l * 0x200000 for l in range(2)]
HP  = [0x2000000 + l * 0x800000 for l in range(2)]
WS_BYTES = 0x10000000
OOB = 0x7FFFFF00
def f32(x): return "0x%08x" % struct.unpack("<I", struct.pack("<f", x))[0]
QSCALE = (28 ** -0.5) * math.log2(math.e)

kernels = []

def srd(a, d, lo, hi, nbytes):
    a(f"s_mov_b32 s{d}, s{lo}\ns_mov_b32 s{d+1}, s{hi}\ns_mov_b32 s{d+2}, {nbytes:#x}\ns_mov_b32 s{d+3}, 0x00020000")

def prologue(a, label, grid, extra_ptr=None, extra_bytes=0):
    a(f"s_cmp_ge_u32 s2, {grid}\ns_cbranch_scc1 {label}_end")
    a("s_load_dwordx2 s[12:13], s[0:1], 64")
    if extra_ptr is not None: a(f"s_load_dwordx2 s[14:15], s[0:1], {extra_ptr*8}")
    a("""v_lshrrev_b32 v4, 6, v0
v_and_b32 v1, 63, v0
v_readfirstlane_b32 s20, v4
v_and_b32 v2, 31, v1
v_lshrrev_b32 v3, 5, v1
v_lshlrev_b32 v1, 4, v1
s_waitcnt lgkmcnt(0)""")
    srd(a, 4, 12, 13, WS_BYTES)
    if extra_ptr is not None: srd(a, 8, 14, 15, extra_bytes)

def k_prep():
    a = Asm(); L = "prep_kernel"
    G = 48 + 56 + 56 + 14 + 64
    a(f"s_cmp_ge_u32 s2, {G}\ns_cbranch_scc1 {L}_end")
    a("""s_load_dwordx2 s[12:13], s[0:1], 64
s_load_dwordx4 s[24:27], s[0:1], 0
s_load_dwordx2 s[28:29], s[0:1], 16
s_load_dwordx4 s[32:35], s[0:1], 32
v_lshrrev_b32 v4, 6, v0
v_and_b32 v1, 63, v0
v_readfirstlane_b32 s20, v4
v_and_b32 v2, 31, v1
v_lshrrev_b32 v3, 5, v1
v_lshlrev_b32 v5, 2, v1
v_lshlrev_b32 v1, 4, v1
s_waitcnt lgkmcnt(0)""")
    srd(a, 4, 12, 13, WS_BYTES)
    a(f"""s_cmp_lt_u32 s2, 48
s_cbranch_scc1 {L}_qkv
s_cmp_lt_u32 s2, 104
s_cbranch_scc1 {L}_w1
s_cmp_lt_u32 s2, 160
s_cbranch_scc1 {L}_w2
s_cmp_lt_u32 s2, 174
s_cbranch_scc1 {L}_wo
s_branch {L}_x""")
    def pack(tag, pitch, nfr, rowbase, wo=False, colsum=None):
        if wo:
            a(f"v_mov_b32 v8, {OOB:#x}\nv_cmp_eq_u32 vcc, 1, v3\nv_cndmask_b32 v7, v6, v8, vcc")
        for f in range(nfr):
            for j in range(8):
                row = rowbase(f) + 8 * (j >> 2) + (j & 3)
                vo = "v7" if (wo and (f & 1) and j >= 4) else "v6"
                a(f"s_add_u32 s23, s21, {row*pitch}")
                a(f"buffer_load_ushort v{(64 if j & 1 else 16)+4*f+(j>>1)}, {vo}, s[8:11], s23 offen")
            if f == 6 and nfr == 8: a("s_waitcnt vmcnt(48)")
        a("s_waitcnt vmcnt(0)")
        for i in range(4 * nfr): a(f"v_lshl_or_b32 v{16+i}, v{64+i}, 16, v{16+i}")
        for f in range(nfr):
            a(f"s_add_u32 s23, s22, {f*1024}")
            a(f"buffer_store_dwordx4 v[{16+4*f}:{19+4*f}], v1, s[4:7], s23 offen")
        if colsum is not None:
            a("v_mov_b32 v9, 0\nv_mov_b32 v10, 0x3f803f80")
            for i in range(4 * nfr): a(f"v_dot2c_f32_bf16 v9, v{16+i}, v10")
            a("""s_lshl_b32 s23, s20, 8
v_add_u32 v11, s23, v5
ds_write_b32 v11, v9
s_waitcnt lgkmcnt(0)
s_barrier
v_lshlrev_b32 v11, 2, v2""")
            for i in range(8): a(f"ds_read_b32 v{48+i}, v11 offset:{128*i}")
            a("s_waitcnt lgkmcnt(0)")
            for i in range(1, 8): a(f"v_add_f32 v48, v48, v{48+i}")
            a(f"""s_cmp_lg_u32 s20, 0
s_cbranch_scc1 {L}_end
s_mov_b32 exec_hi, 0
buffer_store_dword v48, v11, s[4:7], s36 offen""")
        a(f"s_branch {L}_end")
    a(f"{L}_qkv:")
    srd(a, 8, 26, 27, 448 * 1344 * 2)
    a(f"""s_lshr_b32 s30, s2, 4
s_and_b32 s31, s2, 15
s_mul_i32 s30, s30, 448
s_mul_i32 s31, s31, 28
s_add_u32 s30, s30, s31
v_add_u32 v6, s30, v2
v_lshlrev_b32 v6, 1, v6
v_mul_u32_u24 v7, {4*2688}, v3
v_add_u32 v6, v6, v7
v_mov_b32 v8, {OOB:#x}
v_cmp_lt_u32 vcc, 27, v2
v_cndmask_b32 v6, v6, v8, vcc
s_mul_i32 s21, s20, {7*16*2688}
s_mul_i32 s22, s2, {28*1024}
s_mul_i32 s23, s20, {7*1024}
s_add_u32 s22, s22, s23
s_add_u32 s22, s22, {WQKV_P}
s_lshl_b32 s36, s2, 7
s_add_u32 s36, s36, {CSQKV}""")
    pack("qkv", 2688, 7, lambda f: 16 * f, colsum=True)
    a(f"{L}_w1:")
    srd(a, 8, 32, 33, 448 * 1792 * 2)
    a(f"""s_sub_u32 s30, s2, 48
s_lshl_b32 s31, s30, 5
v_add_u32 v6, s31, v2
v_lshlrev_b32 v6, 1, v6
v_mul_u32_u24 v7, {4*3584}, v3
v_add_u32 v6, v6, v7
s_mul_i32 s21, s20, {7*16*3584}
s_mul_i32 s22, s30, {28*1024}
s_mul_i32 s23, s20, {7*1024}
s_add_u32 s22, s22, s23
s_add_u32 s22, s22, {W1_P}
s_lshl_b32 s36, s30, 7
s_add_u32 s36, s36, {CS1}""")
    pack("w1", 3584, 7, lambda f: 16 * f, colsum=True)
    a(f"{L}_w2:")
    srd(a, 8, 34, 35, 1792 * 448 * 2)
    a(f"""s_sub_u32 s30, s2, 104
s_lshr_b32 s31, s30, 2
s_lshl_b32 s31, s31, 5
v_add_u32 v6, s31, v2
v_lshlrev_b32 v6, 1, v6
v_mul_u32_u24 v7, {4*896}, v3
v_add_u32 v6, v6, v7
s_and_b32 s31, s30, 3
s_lshl_b32 s31, s31, 2
s_add_u32 s31, s31, s20
s_mul_i32 s21, s31, {7*16*896}
s_mul_i32 s22, s30, {28*1024}
s_mul_i32 s23, s20, {7*1024}
s_add_u32 s22, s22, s23
s_add_u32 s22, s22, {W2_P}""")
    pack("w2", 896, 7, lambda f: 16 * f)
    a(f"{L}_wo:")
    srd(a, 8, 28, 29, 448 * 448 * 2)
    a(f"""s_sub_u32 s30, s2, 160
s_lshl_b32 s31, s30, 5
v_add_u32 v6, s31, v2
v_lshlrev_b32 v6, 1, v6
v_mul_u32_u24 v7, {4*896}, v3
v_add_u32 v6, v6, v7
s_mul_i32 s21, s20, {4*28*896}
s_lshl_b32 s22, s30, 15
s_lshl_b32 s23, s20, 13
s_add_u32 s22, s22, s23
s_add_u32 s22, s22, {WO_P}""")
    pack("wo", 896, 8, lambda f: 28 * (f >> 1) + 16 * (f & 1), wo=True)
    a(f"{L}_x:")
    srd(a, 8, 24, 25, 2048 * 448 * 2)
    a(f"""s_sub_u32 s30, s2, 174
v_mul_u32_u24 v6, 896, v2
v_lshlrev_b32 v7, 4, v3
v_add_u32 v6, v6, v7
s_mul_i32 s21, s30, {32*896}
s_mul_i32 s23, s20, {7*32}
s_add_u32 s21, s21, s23
s_mul_i32 s22, s30, {28*1024}
s_mul_i32 s23, s20, {7*1024}
s_add_u32 s22, s22, s23
s_add_u32 s22, s22, {XP[0]}""")
    for f in range(7): a(f"buffer_load_dwordx4 v[{16+4*f}:{19+4*f}], v6, s[8:11], s21 offen offset:{32*f}")
    a("v_mov_b32 v8, 0\nv_mov_b32 v9, 0\nv_mov_b32 v10, 0x3f803f80")
    a("s_waitcnt vmcnt(0)")
    for i in range(28):
        a(f"v_dot2c_f32_bf16 v8, v{16+i}, v10")
        a(f"v_dot2c_f32_bf16 v9, v{16+i}, v{16+i}")
    for f in range(7):
        a(f"v_permlane32_swap_b32 v{16+4*f}, v{18+4*f}\nv_permlane32_swap_b32 v{17+4*f}, v{19+4*f}")
        a(f"s_add_u32 s23, s22, {f*1024}")
        a(f"buffer_store_dwordx4 v[{16+4*f}:{19+4*f}], v1, s[4:7], s23 offen")
    a(f"""v_lshlrev_b32 v11, 3, v2
v_lshlrev_b32 v12, 14, v3
v_add_u32 v11, v11, v12
s_lshl_b32 s23, s20, 15
s_lshl_b32 s21, s30, 8
s_add_u32 s23, s23, s21
s_add_u32 s23, s23, {ST[0]}
buffer_store_dwordx2 v[8:9], v11, s[4:7], s23 offen""")
    a(f"{L}_end:\ns_endpgm")
    kernels.append((L, G, 1024, 96, 96, a))

def ln_stats(a, base, NP, vmean, vrstd, vt):
    for i in range(1, NP):
        a(f"v_add_f32 v{base}, v{base}, v{base+2*i}\nv_add_f32 v{base+1}, v{base+1}, v{base+2*i+1}")
    a(f"""v_mov_b32 v{vt}, v{base}
v_mov_b32 v{vt+1}, v{base+1}
v_permlane32_swap_b32 v{base}, v{vt}
v_permlane32_swap_b32 v{base+1}, v{vt+1}
v_add_f32 v{base}, v{base}, v{vt}
v_add_f32 v{base+1}, v{base+1}, v{vt+1}
v_mul_f32 v{vmean}, {f32(-1.0/448)}, v{base}
v_mul_f32 v{base+1}, {f32(1.0/448)}, v{base+1}
v_fma_f32 v{base+1}, -v{vmean}, v{vmean}, v{base+1}
v_max_f32 v{base+1}, 0, v{base+1}
v_add_f32 v{base+1}, {f32(1e-5)}, v{base+1}
v_rsq_f32 v{vrstd}, v{base+1}""")

def k_lngemm(label, kind, xin, stin, NP, layer):
    a = Asm(); L = label
    NT = 3 if kind == "qkv" else 4
    G = 256 if kind == "qkv" else 224
    prologue(a, L, G)
    a(f"""s_and_b32 s21, s2, 7
s_lshl_b32 s21, s21, 1
s_bfe_u32 s22, s2, 0x10003
s_add_u32 s21, s21, s22
s_lshl_b32 s21, s21, 2
s_add_u32 s21, s21, s20
s_lshr_b32 s22, s2, 4
s_mul_i32 s23, s21, {28*1024}
s_add_u32 s23, s23, {xin}
s_mul_i32 s28, s20, {NT*1024}""")
    WB = WQKV_P if kind == "qkv" else W1_P
    for t in range(NT):
        if kind == "qkv": a(f"s_add_u32 s{24+t}, s22, {16*t}")
        else: a(f"s_lshl_b32 s{24+t}, s22, 2\ns_add_u32 s{24+t}, s{24+t}, {t}")
        a(f"s_mul_i32 s{30+t}, s{24+t}, 28\ns_add_u32 s{30+t}, s{30+t}, s20\ns_lshl_b32 s{30+t}, s{30+t}, 10\ns_add_u32 s{30+t}, s{30+t}, {WB}")
    for c in range(7):
        for t in range(NT):
            a(f"s_add_u32 m0, s28, {c*4*NT*1024 + t*1024}\ns_add_u32 s29, s{30+t}, {c*4096}")
            a(f"buffer_load_dwordx4 v1, s[4:7], s29 offen lds")
        a(f"s_add_u32 s29, s23, {c*4096}")
        for q in range(4):
            ks = 4 * c + q
            a(f"buffer_load_dwordx4 a[{4*ks}:{4*ks+3}], v1, s[4:7], s29 offen offset:{q*1024}")
    per = NT + 4
    ACC = 16
    CS = 16 + 16 * NT
    NCS = 2 if kind == "qkv" else 4
    STB = CS + 16 * NCS + 2
    CSV = CS + 16 * NCS
    nextra = 4 * NCS + (1 if kind == "qkv" else 0) + NP
    CSB = CSQKV if kind == "qkv" else CS1
    WR = 112
    for c in range(7):
        a(f"s_waitcnt vmcnt({per*(6-c) + (nextra if c >= 2 else 0)})\ns_barrier")
        buf = WR + (c & 1) * 16 * 4
        nfr = 4 * NT
        def rd(i): a(f"ds_read_b128 a[{buf+4*i}:{buf+4*i+3}], v1 offset:{(c*nfr+i)*1024}" if (c*nfr+i) < 64 else
                     f"ds_read_b128 a[{buf+4*i}:{buf+4*i+3}], v5 offset:{(c*nfr+i-64)*1024}")
        if c == 0: a("v_add_u32 v5, 0x10000, v1")
        pre = min(nfr, 8)
        for i in range(pre): rd(i)
        issued = pre
        for i in range(nfr):
            q, t = divmod(i, NT)
            ks = 4 * c + q
            a(f"s_waitcnt lgkmcnt({issued - i - 1})")
            cin = "0" if ks == 0 else f"v[{ACC+16*t}:{ACC+16*t+15}]"
            W = f"a[{buf+4*i}:{buf+4*i+3}]"; X = f"a[{4*ks}:{4*ks+3}]"
            if kind == "qkv" and t == 2: a(f"v_mfma_f32_32x32x16_bf16 v[{ACC+16*t}:{ACC+16*t+15}], {X}, {W}, {cin}")
            else: a(f"v_mfma_f32_32x32x16_bf16 v[{ACC+16*t}:{ACC+16*t+15}], {W}, {X}, {cin}")
            if issued < nfr: rd(issued); issued += 1
        if c == 1:
            a("v_lshlrev_b32 v6, 4, v3")
            for t in range(NCS):
                a(f"s_lshl_b32 s29, s{24+t}, 7\ns_add_u32 s29, s29, {CSB}")
                for g in range(4): a(f"buffer_load_dwordx4 v[{CS+16*t+4*g}:{CS+16*t+4*g+3}], v6, s[4:7], s29 offen offset:{32*g}")
            if kind == "qkv":
                a(f"v_lshlrev_b32 v7, 2, v2\ns_lshl_b32 s29, s26, 7\ns_add_u32 s29, s29, {CSB}")
                a(f"buffer_load_dword v{CSV}, v7, s[4:7], s29 offen")
            a(f"v_lshlrev_b32 v7, 3, v2\nv_mul_u32_u24 v8, {NP*16384}, v3\nv_add_u32 v7, v7, v8")
            a(f"s_lshl_b32 s29, s21, 8\ns_add_u32 s29, s29, {stin}")
            for p in range(NP):
                a(f"buffer_load_dwordx2 v[{STB+2*p}:{STB+2*p+1}], v7, s[4:7], s29 offen")
                if p < NP - 1: a("s_add_u32 s29, s29, 16384")
    a("s_waitcnt vmcnt(0)")
    ln_stats(a, STB, NP, 8, 9, 10)
    PK = STB + 2 * NP + (-(STB + 2 * NP)) % 4
    if kind == "qkv":
        LB = 84 * 1024
        a(f"""v_mul_f32 v10, v8, v9
v_cmp_eq_u32 vcc, 1, v3
v_cndmask_b32 v10, v9, v10, vcc
s_lshl_b32 s29, s20, 8
s_add_u32 s29, s29, {LB}
v_lshrrev_b32 v11, 2, v1
v_add_u32 v11, s29, v11
ds_write_b32 v11, v10
v_add_u32 v12, s29, v6
v_mul_f32 v13, {f32(QSCALE)}, v9""")
        VS = PK + 8
        a("s_waitcnt lgkmcnt(0)")
        for g in range(4):
            a(f"ds_read_b128 v[{VS+4*g}:{VS+4*g+3}], v12 offset:{32*g}")
            a(f"ds_read_b128 v[{VS+16+4*g}:{VS+16+4*g+3}], v12 offset:{128+32*g}")
        a(f"""s_lshl_b32 s29, s22, 6
s_add_u32 s29, s29, s21
s_lshl_b32 s34, s29, 11
s_add_u32 s34, s34, {QP[layer]}
s_lshl_b32 s35, s29, 12
s_add_u32 s35, s35, {KVP[layer]}""")
        for t in range(2):
            sc = "v13" if t == 0 else "v9"
            for r in range(16):
                a(f"v_fma_f32 v{ACC+16*t+r}, v{CS+16*t+r}, v8, v{ACC+16*t+r}")
                a(f"v_mul_f32 v{ACC+16*t+r}, v{ACC+16*t+r}, {sc}")
            for i in range(8): a(f"v_cvt_pk_bf16_f32 v{CS+16*t+i}, v{ACC+16*t+2*i}, v{ACC+16*t+2*i+1}")
            for s in range(2): a(f"buffer_store_dwordx4 v[{CS+16*t+4*s}:{CS+16*t+4*s+3}], v1, s[4:7], s{34+t} offen offset:{s*1024}")
        a("s_waitcnt lgkmcnt(0)")
        for r in range(16):
            a(f"v_mul_f32 v{VS+16+r}, v{VS+16+r}, v{CSV}")
            a(f"v_fma_f32 v{ACC+32+r}, v{ACC+32+r}, v{VS+r}, v{VS+16+r}")
        a("v_mov_b32 v10, 0x3f803f80\nv_cmp_eq_u32 vcc, 28, v2")
        for i in range(8):
            a(f"v_cvt_pk_bf16_f32 v{PK+i}, v{ACC+32+2*i}, v{ACC+32+2*i+1}")
            a(f"v_cndmask_b32 v{PK+i}, v{PK+i}, v10, vcc")
        for s in range(2): a(f"buffer_store_dwordx4 v[{PK+4*s}:{PK+4*s+3}], v1, s[4:7], s35 offen offset:{2048+s*1024}")
        nv = VS + 32; lds = 84 * 1024 + 1024
    else:
        a(f"""s_mul_i32 s29, s21, 112
s_lshl_b32 s34, s22, 3
s_add_u32 s29, s29, s34
s_lshl_b32 s29, s29, 10
s_add_u32 s29, s29, {HP[layer]}
s_add_u32 s34, s29, 4096""")
        for t in range(4):
            for r in range(16):
                a(f"v_fma_f32 v{ACC+16*t+r}, v{CS+16*t+r}, v8, v{ACC+16*t+r}")
                a(f"v_mul_f32 v{ACC+16*t+r}, v{ACC+16*t+r}, v9")
            for i in range(8):
                a(f"v_cvt_pk_bf16_f32 v{CS+16*t+i}, v{ACC+16*t+2*i}, v{ACC+16*t+2*i+1}")
                a(f"v_pk_max_i16 v{CS+16*t+i}, v{CS+16*t+i}, 0")
            for s in range(2):
                a(f"buffer_store_dwordx4 v[{CS+16*t+4*s}:{CS+16*t+4*s+3}], v1, s[4:7], s{29 if t < 2 else 34} offen offset:{((2*t+s)&3)*1024}")
        nv = PK; lds = 112 * 1024
    a(f"{L}_end:\ns_endpgm")
    nv = (nv + 3) // 4 * 4
    kernels.append((L, G, lds, nv + 240, nv, a))

def reduce4(a, ACC, DST):
    a("s_lshl_b32 s29, s20, 12\nv_add_u32 v5, s29, v1\ns_lshl_b32 s29, s20, 14\nv_add_u32 v6, s29, v1")
    for t in range(4):
        for q in range(4):
            a(f"ds_write_b128 v5, v[{ACC+16*t+4*q}:{ACC+16*t+4*q+3}] offset:{t*16384+q*1024}")
        if t in (1,): a("s_waitcnt lgkmcnt(4)")
    a("s_waitcnt lgkmcnt(0)\ns_barrier")
    for s in range(4):
        for q in range(4):
            a(f"ds_read_b128 v[{DST+16*s+4*q}:{DST+16*s+4*q+3}], v6 offset:{s*4096+q*1024}")
        if s == 2: a("s_waitcnt lgkmcnt(4)")
        if s == 2:
            for r in range(16): a(f"v_add_f32 v{DST+r}, v{DST+r}, v{DST+16+r}")
    a("s_waitcnt lgkmcnt(0)")
    for r in range(16): a(f"v_add_f32 v{DST+32+r}, v{DST+32+r}, v{DST+48+r}")
    for r in range(16): a(f"v_add_f32 v{DST+r}, v{DST+r}, v{DST+32+r}")

def k_res(label, act, KS, wb, xin, xout, stout, final=False):
    a = Asm(); L = label; G = 224
    KW = KS // 4; D = min(KW, 14)
    prologue(a, L, G, extra_ptr=6 if final else None, extra_bytes=2048 * 448 * 2)
    a(f"""s_and_b32 s21, s2, 7
s_lshl_b32 s21, s21, 2
s_bfe_u32 s22, s2, 0x20003
s_add_u32 s21, s21, s22
s_lshl_b32 s21, s21, 1
s_lshr_b32 s22, s2, 5
s_lshl_b32 s22, s22, 1
s_mul_i32 s23, s20, {KW*1024}
s_mul_i32 s24, s21, {KS*1024}
s_add_u32 s24, s24, s23
s_add_u32 s24, s24, {act}
s_add_u32 s25, s24, {KS*1024}
s_mul_i32 s26, s22, {KS*1024}
s_add_u32 s26, s26, s23
s_add_u32 s26, s26, {wb}
s_add_u32 s27, s26, {KS*1024}""")
    def loads(kk):
        sl = kk % D
        if kk % 4 == 0 and kk > 0:
            for i in range(4): a(f"s_add_u32 s{24+i}, s{24+i}, 4096")
        for i in range(4):
            a(f"buffer_load_dwordx4 a[{16*sl+4*i}:{16*sl+4*i+3}], v1, s[4:7], s{24+i} offen offset:{(kk%4)*1024}")
    for kk in range(D): loads(kk)
    RES = 8
    a(f"""s_lshr_b32 s28, s20, 1
s_add_u32 s30, s21, s28
s_and_b32 s28, s20, 1
s_add_u32 s31, s22, s28
s_mul_i32 s28, s30, 28
s_lshl_b32 s29, s31, 1
s_add_u32 s28, s28, s29
s_lshl_b32 s32, s28, 10
s_add_u32 s28, s32, {xin}""")
    a(f"buffer_load_dwordx4 v[{RES}:{RES+3}], v1, s[4:7], s28 offen\nbuffer_load_dwordx4 v[{RES+4}:{RES+7}], v1, s[4:7], s28 offen offset:1024")
    ACC = 16
    issued = D
    for kk in range(KW):
        sl = kk % D
        n = (issued - kk - 1) * 4 + (2 if kk < D else 0)
        a(f"s_waitcnt vmcnt({n})")
        for i in range(2):
            for j in range(2):
                t = 2 * i + j
                cin = "0" if kk == 0 else f"v[{ACC+16*t}:{ACC+16*t+15}]"
                a(f"v_mfma_f32_32x32x16_bf16 v[{ACC+16*t}:{ACC+16*t+15}], a[{16*sl+8+4*j}:{16*sl+8+4*j+3}], a[{16*sl+4*i}:{16*sl+4*i+3}], {cin}")
        if issued < KW: loads(issued); issued += 1
    DST = 80
    reduce4(a, ACC, DST)
    a("s_waitcnt vmcnt(0)")
    for i in range(8):
        a(f"v_lshlrev_b32 v{ACC+2*i}, 16, v{RES+i}\nv_and_b32 v{ACC+2*i+1}, 0xffff0000, v{RES+i}")
    for r in range(16): a(f"v_add_f32 v{DST+r}, v{DST+r}, v{ACC+r}")
    for i in range(8): a(f"v_cvt_pk_bf16_f32 v{RES+i}, v{DST+2*i}, v{DST+2*i+1}")
    if not final:
        a(f"s_add_u32 s28, s32, {xout}")
        a(f"buffer_store_dwordx4 v[{RES}:{RES+3}], v1, s[4:7], s28 offen\nbuffer_store_dwordx4 v[{RES+4}:{RES+7}], v1, s[4:7], s28 offen offset:1024")
        a(f"v_mov_b32 v{ACC}, 0\nv_mov_b32 v{ACC+1}, 0\nv_mov_b32 v{ACC+2}, 0x3f803f80")
        for i in range(8):
            a(f"v_dot2c_f32_bf16 v{ACC}, v{RES+i}, v{ACC+2}\nv_dot2c_f32_bf16 v{ACC+1}, v{RES+i}, v{RES+i}")
        a(f"""v_mov_b32 v{ACC+4}, v{ACC}
v_mov_b32 v{ACC+5}, v{ACC+1}
v_permlane32_swap_b32 v{ACC}, v{ACC+4}
v_permlane32_swap_b32 v{ACC+1}, v{ACC+5}
v_add_f32 v{ACC}, v{ACC}, v{ACC+4}
v_add_f32 v{ACC+1}, v{ACC+1}, v{ACC+5}
v_lshlrev_b32 v5, 3, v2
s_lshl_b32 s28, s31, 14
s_lshl_b32 s29, s30, 8
s_add_u32 s28, s28, s29
s_add_u32 s28, s28, {stout}
s_mov_b32 exec_hi, 0
buffer_store_dwordx2 v[{ACC}:{ACC+1}], v5, s[4:7], s28 offen""")
    else:
        for s in range(2):
            a(f"v_permlane32_swap_b32 v{RES+4*s}, v{RES+4*s+2}\nv_permlane32_swap_b32 v{RES+4*s+1}, v{RES+4*s+3}")
        a(f"""v_mul_u32_u24 v5, 896, v2
v_lshlrev_b32 v6, 4, v3
v_add_u32 v5, v5, v6
s_mul_i32 s28, s30, {32*896}
s_lshl_b32 s29, s31, 6
s_add_u32 s28, s28, s29
buffer_store_dwordx4 v[{RES}:{RES+3}], v5, s[8:11], s28 offen
buffer_store_dwordx4 v[{RES+4}:{RES+7}], v5, s[8:11], s28 offen offset:32""")
    a(f"{L}_end:\ns_endpgm")
    kernels.append((L, G, 65536, 144 + 16 * D, 144, a))

def k_attn(label, layer):
    a = Asm(); L = label; G = 256
    prologue(a, L, G)
    srd(a, 8, 12, 13, WS_BYTES)
    a(f"""s_and_b32 s21, s2, 7
s_lshl_b32 s21, s21, 1
s_bfe_u32 s22, s2, 0x10003
s_add_u32 s21, s21, s22
s_lshr_b32 s22, s2, 4
s_lshl_b32 s23, s21, 6
s_lshl_b32 s24, s22, 2
s_add_u32 s24, s24, s23
s_lshl_b32 s24, s24, 11
s_add_u32 s24, s24, {QP[layer]}
s_add_u32 s25, s24, 4096
s_lshl_b32 s26, s20, 4
s_add_u32 s26, s26, s23
s_lshl_b32 s26, s26, 12
s_add_u32 s26, s26, {KVP[layer]}""")
    QR = 0; KV = 32
    def kvload(b):
        for i in range(4): a(f"buffer_load_dwordx4 a[{KV+16*b+4*i}:{KV+16*b+4*i+3}], v1, s[8:11], s26 offen offset:{i*1024}")
        a("s_add_u32 s26, s26, 4096")
    for i in range(8): a(f"buffer_load_dwordx4 a[{QR+4*i}:{QR+4*i+3}], v1, s[4:7], s{24 + (i>>2)} offen offset:{(i&3)*1024}")
    for b in range(4): kvload(b)
    S = 16; P = 48; O = 64
    for r in range(64): a(f"v_mov_b32 v{O+r}, 0")
    def qk(b, t, sb, s):
        cin = "0" if s == 0 else f"v[{S+16*sb}:{S+16*sb+15}]"
        a(f"v_mfma_f32_32x32x16_bf16 v[{S+16*sb}:{S+16*sb+15}], a[{KV+16*b+4*s}:{KV+16*b+4*s+3}], a[{QR+8*t+4*s}:{QR+8*t+4*s+3}], {cin}")
    def pv(b, t, s):
        a(f"v_mfma_f32_32x32x16_bf16 v[{O+16*t}:{O+16*t+15}], a[{KV+16*b+8+4*s}:{KV+16*b+8+4*s+3}], v[{P+4*s}:{P+4*s+3}], v[{O+16*t}:{O+16*t+15}]")
    def ex(sb, i): a(f"v_exp_f32 v{S+16*sb+i}, v{S+16*sb+i}")
    def cv(sb, i): a(f"v_cvt_pk_bf16_f32 v{P+i}, v{S+16*sb+2*i}, v{S+16*sb+2*i+1}")
    a("s_waitcnt vmcnt(12)")
    qk(0, 0, 0, 0); qk(0, 0, 0, 1)
    a("s_mov_b32 s27, 0\ns_nop 7\ns_nop 3")
    ex(0, 0); ex(0, 1)
    a(f"{L}_loop:")
    for b in range(4):
        for t in range(4):
            u = 4 * b + t; sb = u & 1
            nb, nt = (b, t + 1) if t < 3 else ((b + 1) & 3, 0)
            ex(sb, 2); ex(sb, 3)
            if t == 3: a("s_waitcnt vmcnt(8)")
            qk(nb, nt, sb ^ 1, 0)
            if t == 0:
                if b == 0:
                    a(f"s_cmp_eq_u32 s27, 0\ns_cbranch_scc1 {L}_skip")
                    kvload(3)
                    a(f"{L}_skip:")
                    a("s_cmp_eq_u32 s27, 3\ns_cselect_b32 s10, 0, s10")
                else: kvload(b - 1)
            for i in range(4, 8): ex(sb, i)
            cv(sb, 0); cv(sb, 1)
            qk(nb, nt, sb ^ 1, 1)
            cv(sb, 2); cv(sb, 3)
            for i in range(8, 12): ex(sb, i)
            pv(b, t, 0)
            for i in range(12, 16): ex(sb, i)
            for i in range(4, 8): cv(sb, i)
            ex(sb ^ 1, 0); ex(sb ^ 1, 1)
            pv(b, t, 1)
    a(f"s_add_u32 s27, s27, 1\ns_cmp_lt_u32 s27, 4\ns_cbranch_scc1 {L}_loop")
    a("s_nop 15")
    DST = 128
    reduce4(a, O, DST)
    a(f"""v_mov_b32 v8, v{DST+12}
v_mov_b32 v9, v{DST+12}
v_permlane32_swap_b32 v8, v9
v_rcp_f32 v9, v9""")
    for r in range(16): a(f"v_mul_f32 v{DST+r}, v{DST+r}, v9")
    for i in range(8): a(f"v_cvt_pk_bf16_f32 v{P+i}, v{DST+2*i}, v{DST+2*i+1}")
    a(f"""s_lshl_b32 s28, s22, 2
s_add_u32 s28, s28, s20
s_lshl_b32 s28, s28, 5
s_lshl_b32 s29, s21, 1
s_add_u32 s28, s28, s29
s_lshl_b32 s28, s28, 10
s_add_u32 s28, s28, {OP[layer]}
buffer_store_dwordx4 v[{P}:{P+3}], v1, s[4:7], s28 offen
buffer_store_dwordx4 v[{P+4}:{P+7}], v1, s[4:7], s28 offen offset:1024""")
    a(f"{L}_end:\ns_endpgm")
    kernels.append((L, G, 65536, 192 + 96, 192, a))

k_prep()
for l in range(2):
    k_lngemm(f"qkv{l}_kernel", "qkv", XP[2*l], ST[2*l], 4 if l == 0 else 7, l)
    k_attn(f"attn{l}_kernel", l)
    k_res(f"wo{l}_kernel", OP[l], 32, WO_P, XP[2*l], XP[2*l+1], ST[2*l+1])
    k_lngemm(f"ffa{l}_kernel", "ffn1", XP[2*l+1], ST[2*l+1], 7, l)
    k_res(f"ffb{l}_kernel", HP[l], 112, W2_P, XP[2*l+1], XP[2*l+2] if l == 0 else 0, ST[2*l+2] if l == 0 else 0, final=(l == 1))

hdr = open("cdna_kernels/" + NAME + ".s.ref").read().split("; Override launch")[0]
out = hdr
for (L, G, lds, nv, acc, a) in kernels:
    out += f"; @launch kernel={L} grid=({G},1,1) block=(256,1,1) lds={lds}\n"
out += '.amdgcn_target "amdgcn-amd-amdhsa--gfx950"\n.text\n'
for (L, G, lds, nv, acc, a) in kernels:
    a.fix()
    bad = a.check_branches()
    for b in bad: print("HAZARD across branch:", L, b, file=sys.stderr)
    out += f".globl {L}\n.p2align 8\n.type {L},@function\n{L}:\n" + a.text()
out += '.section .rodata,"a"\n'
for (L, G, lds, nv, acc, a) in kernels:
    out += f""".p2align 6
.amdhsa_kernel {L}
  .amdhsa_next_free_vgpr {nv}
  .amdhsa_next_free_sgpr 64
  .amdhsa_accum_offset {acc}
  .amdhsa_group_segment_fixed_size 0
  .amdhsa_kernarg_size 72
  .amdhsa_user_sgpr_count 2
  .amdhsa_user_sgpr_kernarg_segment_ptr 1
  .amdhsa_system_sgpr_workgroup_id_x 1
.end_amdhsa_kernel
"""
open(sys.argv[1] if len(sys.argv) > 1 else "cdna_kernels/" + NAME + ".s", "w").write(out)
```
